```python
import torch

def _softmax(x, axis=-1):
    return torch.softmax(x, dim=axis)

def _gelu(x):
    return torch.nn.functional.gelu(x, approximate='tanh')

def _silu(x):
    return torch.nn.functional.silu(x)

def _sigmoid(x):
    return torch.sigmoid(x)

def _layernorm(x, axis=-1, eps=1e-05):
    m = x.mean(dim=axis, keepdim=True)
    v = x.var(dim=axis, keepdim=True, unbiased=False)
    return (x - m) / torch.sqrt(v + eps)

def _scatter_add(tgt, idx, src, axis=0):
    return tgt.clone().index_add_(axis, idx, src)

def _segment_sum(src, seg, n):
    out = torch.zeros((n,) + src.shape[1:], dtype=src.dtype)
    return out.index_add_(0, seg, src)

def _pad(x, pw):
    flat = tuple((v for pair in reversed(pw) for v in pair))
    return torch.nn.functional.pad(x, flat)
kernel_name = 'recurrent_scan__sliding_local_dilated__mixer_gmlp__prompt'

def setup_inputs():

    _w = lambda a: (lambda t: t.to(torch.bfloat16) if t.is_floating_point() else t)(torch.as_tensor(a))

    def _A_setup():
        B, S, D = (1, 2048, 512)
        return {'x': _w((lambda *s: torch.randn(*s, dtype=torch.bfloat16) * 0.05)(B, S, D)), 'wqkv': _w((lambda *s: torch.randn(*s, dtype=torch.bfloat16) * 0.05)(D, 3 * D)), 'wo': _w((lambda *s: torch.randn(*s, dtype=torch.bfloat16) * 0.05)(D, D))}
    _A_in = _A_setup()

    def _B_setup():
        B, S, D, F = (1, 2048, 512, 1376)
        Fh = F // 2
        return {'x': _w((lambda *s: torch.randn(*s, dtype=torch.bfloat16) * 0.05)(B, S, D)), 'w_in': _w((lambda *s: torch.randn(*s, dtype=torch.bfloat16) * 0.4)(D, 2 * Fh)), 'w_sp': _w(0.01 * (lambda *s: torch.randn(*s, dtype=torch.bfloat16) * 0.4)(S, S)), 'b_sp': _w(1.0 + 0.01 * (lambda *s: torch.randn(*s, dtype=torch.bfloat16) * 0.05)(S)), 'w_out': _w((lambda *s: torch.randn(*s, dtype=torch.bfloat16) * 0.05)(Fh, D))}
    _B_in = _B_setup()
    return {'A_x': _A_in['x'], 'A_wqkv': _A_in['wqkv'], 'A_wo': _A_in['wo'], 'B_x': _B_in['x'], 'B_w_in': _B_in['w_in'], 'B_w_sp': _B_in['w_sp'], 'B_b_sp': _B_in['b_sp'], 'B_w_out': _B_in['w_out']}

def reference(A_x, A_wqkv, A_wo, B_x, B_w_in, B_w_sp, B_b_sp, B_w_out):

    def _A_ref(x, wqkv, wo):
        B, S, D = x.shape
        H = 32
        Dh = D // H
        W, dil = (8, 2)
        qkv = (lambda x, *d: x.permute(*d))((x @ wqkv).reshape(B, S, 3, H, Dh), 2, 0, 3, 1, 4)
        q, k, v = (qkv[0], qkv[1], qkv[2])
        scale = Dh ** (-0.5)
        pos = torch.arange(S)
        off = torch.arange(W) * dil
        idx = pos[:, None] - off[None, :]
        mask = idx >= 0
        idx_c = torch.where(mask, idx, 0).reshape(-1)
        kg = k[:, :, idx_c, :].reshape(B, H, S, W, Dh)
        vg = v[:, :, idx_c, :].reshape(B, H, S, W, Dh)
        logits = torch.einsum('bhsd,bhswd->bhsw', q, kg) * scale
        logits = torch.where(mask[None, None, :, :], logits, -1000000000.0)
        attn = _softmax(logits, axis=-1)
        o = torch.einsum('bhsw,bhswd->bhsd', attn, vg)
        return (lambda x, *d: x.permute(*d))(o, 0, 2, 1, 3).reshape(B, S, D) @ wo

    def _B_ref(x, w_in, w_sp, b_sp, w_out):
        B, S, D = x.shape
        F = w_in.shape[-1]
        Fh = F // 2
        z = _gelu(torch.einsum('bsd,df->bsf', x, w_in))
        z1 = z[..., :Fh].clone()
        z2 = _layernorm(z[..., Fh:], axis=-1)
        g = torch.einsum('ts,bsf->btf', w_sp, z2) + b_sp[None, :, None]
        return torch.einsum('bsf,fd->bsd', z1 * g, w_out)
    x = A_x
    xn = _layernorm(x, axis=-1)
    s = _A_ref(xn, A_wqkv, A_wo)
    g = _silu(_B_ref(xn, B_w_in, B_w_sp, B_b_sp, B_w_out))
    return x + s * g
```

```python
import re

TRANS = ('v_exp_f32', 'v_log_f32', 'v_rcp_f32', 'v_rsq_f32', 'v_sqrt_f32', 'v_sin_f32', 'v_cos_f32')
_reg_re = re.compile(r'^(-|abs\()?\|?([vsa])(?:(\d+)|\[(\d+):(\d+)\])\|?\)?$')


def V(b, n=1):
    return f'v{b}' if n == 1 else f'v[{b}:{b + n - 1}]'


def S(b, n=1):
    return f's{b}' if n == 1 else f's[{b}:{b + n - 1}]'


def parse_regs(op):
    op = op.strip()
    if op == 'vcc':
        return {('s', 'vcc')}
    if op == 'exec':
        return {('s', 'exec')}
    if op == 'm0':
        return {('s', 'm0')}
    m = _reg_re.match(op)
    if not m:
        return set()
    k = m.group(2)
    if m.group(3) is not None:
        return {(k, int(m.group(3)))}
    return {(k, i) for i in range(int(m.group(4)), int(m.group(5)) + 1)}


class Ins:
    __slots__ = ('text', 'op', 'ops', 'rd', 'wr', 'kind', 'srcs', 'dpp', 'states')

    def __init__(self, text):
        self.text = text
        t = text.split(';')[0].strip()
        parts = t.split(None, 1)
        self.op = parts[0]
        rest = parts[1] if len(parts) > 1 else ''
        raw = [x.strip() for x in re.split(r',(?![^\[]*\])', rest)] if rest else []
        ops = []
        mods = ''
        for i, x in enumerate(raw):
            if i == len(raw) - 1:
                sp = x.split(None, 1)
                ops.append(sp[0] if sp else '')
                mods = sp[1] if len(sp) > 1 else ''
            else:
                ops.append(x)
        self.ops = ops
        op = self.op
        R = [parse_regs(o) for o in ops]
        self.srcs = R
        self.dpp = '_dpp' in op or 'row_' in mods or 'quad_perm' in mods
        rd, wr = set(), set()
        self.states = 1
        if op.startswith('v_mfma'):
            self.kind = 'mfma'
            wr = R[0]
            rd = R[1] | R[2] | R[3]
        elif op.startswith('v_'):
            self.kind = 'valu'
            if op.startswith('v_swap') or 'permlane' in op:
                wr = R[0] | R[1]
                rd = R[0] | R[1]
            elif op.startswith('v_dot2c') or op.startswith('v_fmac') or op.startswith('v_writelane'):
                wr = R[0]
                rd = set().union(*R)
            elif op == 'v_nop':
                pass
            else:
                wr = R[0]
                rd = set().union(*R[1:]) if len(R) > 1 else set()
                if self.dpp:
                    rd |= R[0]
        elif op.startswith('ds_'):
            self.kind = 'ds'
            if op.startswith('ds_read') or op.startswith('ds_bpermute') or op.startswith('ds_swizzle') or '_rtn' in op:
                wr = R[0]
                rd = set().union(*R[1:])
            else:
                rd = set().union(*R)
        elif op.startswith('buffer_') or op.startswith('global_'):
            self.kind = 'vmem'
            islds = re.search(r'\blds\b', mods) is not None
            if 'load' in op and not islds:
                wr = R[0]
                rd = set().union(*R[1:])
                if 'd16' in op:
                    rd |= R[0]
            else:
                rd = set().union(*R)
                if islds:
                    rd |= {('s', 'm0')}
                    self.kind = 'dma'
        elif op.startswith('s_load') or op.startswith('s_mem'):
            self.kind = 'smem'
            wr = R[0]
            rd = set().union(*R[1:]) if len(R) > 1 else set()
        elif op == 's_nop':
            self.kind = 'nop'
            self.states = int(ops[0], 0) + 1
        elif op in ('s_waitcnt', 's_barrier', 's_setprio', 's_sleep', 's_endpgm') or op.startswith('s_cbranch') or op == 's_branch':
            self.kind = 'ctl'
        elif op.startswith('s_cmp') or op.startswith('s_bitcmp'):
            self.kind = 'salu'
            rd = set().union(*R)
        elif op.startswith('s_'):
            self.kind = 'salu'
            wr = R[0]
            rd = set().union(*R[1:]) if len(R) > 1 else set()
            if op.startswith('s_addk') or op.startswith('s_mulk'):
                rd |= R[0]
            if 'saveexec' in op:
                wr = wr | {('s', 'exec')}
        else:
            raise ValueError('unknown instruction: ' + text)
        self.rd, self.wr = rd, wr


def vonly(s):
    return {r for r in s if r[0] in 'va'}


def sonly(s):
    return {r for r in s if r[0] == 's'}


def need_states(p, c):
    n = 0
    if p.kind == 'valu':
        pw = vonly(p.wr)
        ps = sonly(p.wr)
        if c.kind == 'mfma' and pw & c.rd:
            n = max(n, 2)
        if c.kind == 'valu':
            if pw & c.rd:
                if p.op.startswith(TRANS):
                    n = max(n, 1)
                if 'permlane' in c.op or c.dpp:
                    n = max(n, 2)
                if c.op.startswith('v_readfirstlane') or c.op.startswith('v_readlane'):
                    n = max(n, 1)
            if p.op.startswith('v_dot2'):
                if c.op == p.op:
                    ab = c.srcs[1] | c.srcs[2]
                    if pw & ab:
                        n = max(n, 3)
                elif pw & (c.rd | c.wr):
                    n = max(n, 3)
            if ps & c.rd:
                n = max(n, 4 if 'lane' in c.op and 'permlane' not in c.op else 2)
        elif p.op.startswith('v_dot2') and pw & (c.rd | c.wr):
            n = max(n, 3)
        if p.op.startswith(TRANS) and pw & c.rd:
            n = max(n, 1)
        if c.kind in ('vmem', 'dma') and ps & c.rd:
            n = max(n, 5)
        if c.kind in ('salu',) and ps & c.rd:
            n = max(n, 1)
    elif p.kind == 'mfma':
        big = '32x32' in p.op
        D = p.wr
        if c.kind == 'mfma':
            if D & (c.srcs[1] | c.srcs[2]):
                n = max(n, 12 if big else 8)
            if D & c.srcs[3]:
                if not (c.srcs[3] == D and ('32x32' in c.op) == big):
                    n = max(n, 10 if big else 6)
            if D & c.wr and c.srcs[3] != D:
                n = max(n, 10 if big else 6)
        elif c.kind in ('valu', 'ds', 'vmem', 'dma'):
            if D & (c.rd | c.wr):
                n = max(n, 12 if big else 8)
            if c.kind == 'valu' and p.srcs[3] & c.wr:
                n = max(n, 7 if big else 3)
    elif p.kind == 'vmem':
        if 'store' in p.op and ('x3' in p.op or 'x4' in p.op):
            data = p.srcs[0] if p.op.startswith('buffer') else p.srcs[1]
            if data & c.wr:
                n = max(n, 2)
    elif p.kind == 'salu':
        if ('s', 'm0') in p.wr and c.kind == 'dma':
            n = max(n, 1)
    return n


class Stream:
    def __init__(self, name):
        self.name = name
        self.out = []
        self.hist = []
        self.vm = []
        self.lg = []
        self.smem = set()
        self.nins = 0
        self.nnops = 0

    def fork(self, name):
        s = Stream(name)
        s.hist = list(self.hist)
        s.vm = list(self.vm)
        s.lg = list(self.lg)
        s.smem = set(self.smem)
        return s

    def raw(self, text):
        self.out.append(text)

    def comment(self, text):
        self.out.append('    ; ' + text)

    def label(self, name):
        self.out.append(name + ':')

    def _push(self, ins):
        dist = 0
        need = 0
        for p in reversed(self.hist):
            n = need_states(p, ins)
            if n - dist > need:
                need = n - dist
            dist += p.states
            if dist >= 13:
                break
        if need > 0:
            nop = Ins(f's_nop {need - 1}')
            self.hist.append(nop)
            self.out.append('    ' + nop.text)
            self.nnops += 1
            self.nins += 1
        self.hist.append(ins)
        if len(self.hist) > 32:
            self.hist = self.hist[-32:]
        self.out.append('    ' + ins.text)
        self.nins += 1

    def _wait(self, vm=None, lg=None):
        parts = []
        if vm is not None:
            assert vm >= 0
            vm = min(vm, 63)
            parts.append(f'vmcnt({vm})')
            if vm < len(self.vm):
                self.vm = self.vm[len(self.vm) - vm:] if vm else []
        if lg is not None:
            lg = min(lg, 15)
            parts.append(f'lgkmcnt({lg})')
            if lg < len(self.lg):
                self.lg = self.lg[len(self.lg) - lg:] if lg else []
            if lg == 0:
                self.smem = set()
        self._push(Ins('s_waitcnt ' + ' '.join(parts)))

    def I(self, text, tag=None, count=True):
        ins = Ins(text)
        touched = ins.rd | ins.wr
        vm = lg = None
        for idx, (t, d) in enumerate(self.vm):
            if d & touched:
                vm = len(self.vm) - 1 - idx
        for idx, (t, d) in enumerate(self.lg):
            if d & touched:
                lg = len(self.lg) - 1 - idx
        if self.smem & touched:
            lg = 0
        if lg is not None and self.smem:
            lg = 0
        if vm is not None or lg is not None:
            self._wait(vm, lg)
        self._push(ins)
        if ins.kind in ('vmem', 'dma'):
            if count:
                self.vm.append((tag, set(ins.wr)))
            else:
                assert not ins.wr
        elif ins.kind == 'ds':
            self.lg.append((tag, set(ins.wr)))
        elif ins.kind == 'smem':
            self.smem |= ins.wr
        elif ins.op == 's_waitcnt':
            raise ValueError('use wait helpers')
        return ins

    def wait_vm(self, *tags):
        last = -1
        for idx, (t, d) in enumerate(self.vm):
            if t in tags:
                last = idx
        if last >= 0:
            self._wait(vm=len(self.vm) - 1 - last)

    def wait_vm0(self):
        self._wait(vm=0)

    def wait_lg0(self, force=False):
        if self.lg or self.smem or force:
            self._wait(lg=0)

    def wait_lg(self, *tags):
        last = -1
        for idx, (t, d) in enumerate(self.lg):
            if t in tags:
                last = idx
        if last >= 0:
            self._wait(lg=0 if self.smem else len(self.lg) - 1 - last)

    def barrier(self):
        self._push(Ins('s_barrier'))

    def emit(self, item):
        if callable(item):
            item(self)
        elif isinstance(item, tuple):
            self.I(item[0], item[1])
        else:
            self.I(item)

    def weave(self, main, fill, per=2, start=0):
        fill = list(fill)
        k = 0
        for i, m in enumerate(main):
            self.emit(m)
            if i >= start:
                for _ in range(per):
                    if k < len(fill):
                        self.emit(fill[k])
                        k += 1
        while k < len(fill):
            self.emit(fill[k])
            k += 1


class Alloc:
    def __init__(self, lo, hi):
        self.free = set(range(lo, hi))
        self.hi = 0

    def get(self, n=1, align=None):
        if align is None:
            align = 1 if n == 1 else 2
        for b in sorted(self.free):
            if b % align == 0 and all((b + i) in self.free for i in range(n)):
                for i in range(n):
                    self.free.remove(b + i)
                self.hi = max(self.hi, b + n)
                return b
        raise RuntimeError(f'out of registers ({n})')

    def put(self, b, n=1):
        for i in range(n):
            assert (b + i) not in self.free
            self.free.add(b + i)
```

```python
import sys, struct, math
from asm import *

NAME = 'recurrent_scan__sliding_local_dilated__mixer_gmlp__prompt'
DIAG = '--diag' in sys.argv
OPT = {}
for a in sys.argv[1:]:
    if a.startswith('-D'):
        k, v = a[2:].split('=')
        OPT[k] = int(v, 0)
GATHER_EP = OPT.get('GATHER_EP', 8)
CHECK_EP = OPT.get('CHECK_EP', 10)
NORM_EP = OPT.get('NORM_EP', 11)
FLAG_EP = OPT.get('FLAG_EP', 15)
OFLAG_P = OPT.get('OFLAG_P', 3)
HFLAG_P = OPT.get('HFLAG_P', 20)
ROT = OPT.get('ROT', 0)
SPIN = 1 << 15


def f2u(x):
    return struct.unpack('<I', struct.pack('<f', x))[0]


def hx(x):
    return f'0x{x & 0xffffffff:x}'


LOG2E = 1.4426950408889634
GC0 = -2.0 * math.sqrt(2.0 / math.pi) * LOG2E
GC1 = GC0 * 0.044715
BIGNEG = f2u(-1e30)
OOB = 0x80000000

WR, SCR, XN = 0, 73728, 81920
PA, PB = 0, 65536
Z2_OFF, A3_OFF, ST_OFF = 0, 0x400000, 0xA00000
F1_OFF, F2_OFF, F3_OFF, TS_OFF = 0xB00000, 0xB10000, 0xB20000, 0xC00000
A3_M = 76 * 2048
WS_REC = 0x1000000
R_X, R_QKV, R_WO, R_WIN, R_WSP, R_BSP, R_WOUT, R_OUT, R_DBG, R_WS = 8, 12, 16, 20, 24, 28, 32, 36, 40, 44
sM, sN, sSB, sC6, sWV, sWL, sNONCE, sSIG, sHALF, sR0 = 72, 73, 74, 75, 76, 77, 78, 79, 80, 81
sT0, sT1, sT2, sT3, sSO, sLB, sSPIN, sA, sB, sC, sD = 82, 83, 84, 85, 86, 87, 88, 89, 90, 91, 92
sTS = 94
STAMP0 = 48
vJUNK = 255
vLANE, vG, vI = 1, 2, 3


def srd(r):
    return S(r, 4)


nstamp = {}


def stamp(s, k):
    if not DIAG:
        return
    s.I(f's_memrealtime {S(sTS, 2)}')
    s.I(f's_mov_b32 {S(STAMP0 + k)}, {S(sTS)}')


def dump_stamps(s, va):
    if not DIAG:
        return
    t = va.get()
    a = va.get()
    s.I(f'v_mov_b32 {V(t)}, 0')
    for k in range(22):
        s.I(f'v_writelane_b32 {V(t)}, {S(STAMP0 + k)}, {k}')
    s.I(f'v_lshlrev_b32 {V(a)}, 2, {V(vLANE)}')
    s.I(f's_lshl_b32 {S(sT0)}, s2, 3')
    s.I(f's_add_u32 {S(sT0)}, {S(sT0)}, {S(sWV)}')
    s.I(f's_lshl_b32 {S(sT0)}, {S(sT0)}, 8')
    s.I(f's_add_u32 {S(sT0)}, {S(sT0)}, {hx(TS_OFF)}')
    s.I(f'buffer_store_dword {V(t)}, {V(a)}, {srd(R_WS)}, {S(sT0)} offen')


def prologue():
    s = Stream('common')
    s.I('s_cmp_ge_u32 s2, 0x100')
    s.I('s_cbranch_scc1 L_end')
    s.I('s_load_dwordx16 s[48:63], s[0:1], 0')
    s.I('s_load_dwordx4 s[64:67], s[0:1], 64')
    s.I('s_load_dwordx2 s[68:69], s[0:1], 80')
    s.I(f's_memrealtime {S(sTS, 2)}')
    s.I(f'v_lshrrev_b32 v4, 6, v0')
    s.I(f'v_and_b32 {V(vLANE)}, 63, v0')
    s.I(f'v_readfirstlane_b32 {S(sWV)}, v4')
    s.I(f's_lshr_b32 {S(sT1)}, s2, 3')
    s.I(f's_and_b32 {S(sT2)}, {S(sT1)}, 7')
    s.I(f's_cmp_lg_u32 {S(sT2)}, {S(sWV)}')
    s.I('s_cbranch_scc1 L_nopf')
    s.I('s_getpc_b64 s[70:71]')
    s.label('L_pc')
    s.I(f's_lshl_b32 {S(sT2)}, {S(sT2)}, 13')
    s.I(f'v_lshlrev_b32 v4, 7, {V(vLANE)}')
    s.I(f'v_add_u32 v4, {S(sT2)}, v4')
    s.I('v_min_u32 v4, L_end-L_pc, v4')
    s._push(Ins(f'global_load_dword {V(vJUNK)}, v4, s[70:71]'))
    s.label('L_nopf')
    s.I(f'v_lshrrev_b32 {V(vG)}, 4, {V(vLANE)}')
    s.I(f'v_and_b32 {V(vI)}, 15, {V(vLANE)}')
    s.I(f's_and_b32 {S(sT0)}, s2, 7')
    s.I(f's_lshr_b32 {S(sM)}, {S(sT0)}, 1')
    s.I(f's_lshl_b32 {S(sM)}, {S(sM)}, 3')
    s.I(f's_lshr_b32 {S(sT2)}, {S(sT1)}, 2')
    s.I(f's_add_u32 {S(sM)}, {S(sM)}, {S(sT2)}')
    s.I(f's_and_b32 {S(sN)}, {S(sT0)}, 1')
    s.I(f's_lshl_b32 {S(sN)}, {S(sN)}, 2')
    s.I(f's_and_b32 {S(sT2)}, {S(sT1)}, 3')
    s.I(f's_add_u32 {S(sN)}, {S(sN)}, {S(sT2)}')
    s.I(f's_lshl_b32 {S(sR0)}, {S(sM)}, 6')
    s.I(f's_add_u32 {S(sT2)}, {S(sN)}, 2')
    s.I(f's_mul_i32 {S(sT2)}, {S(sT2)}, 11')
    s.I(f's_lshr_b32 {S(sT2)}, {S(sT2)}, 5')
    s.I(f's_mul_i32 {S(sSB)}, {S(sN)}, 5')
    s.I(f's_add_u32 {S(sSB)}, {S(sSB)}, {S(sT2)}')
    s.I(f's_lshr_b32 {S(sC6)}, 0x49, {S(sN)}')
    s.I(f's_and_b32 {S(sC6)}, {S(sC6)}, 1')
    s.I(f's_and_b32 {S(sWL)}, {S(sWV)}, 3')
    s.I(f's_and_b32 {S(sSIG)}, {S(sWV)}, 1')
    s.I(f's_lshr_b32 {S(sHALF)}, {S(sWL)}, 1')
    sizes = {R_X: 2048 * 512 * 2, R_QKV: 512 * 1536 * 2, R_WO: 512 * 512 * 2, R_WIN: 512 * 1376 * 2,
             R_WSP: 2048 * 2048 * 2, R_BSP: 2048 * 2, R_WOUT: 688 * 512 * 2, R_OUT: 2048 * 512 * 2,
             R_DBG: 256, R_WS: WS_REC}
    for r, sz in sizes.items():
        s.I(f's_mov_b32 {S(r + 2)}, {hx(sz)}')
        s.I(f's_mov_b32 {S(r + 3)}, 0x20000')
    src = {R_X: 48, R_QKV: 50, R_WO: 52, R_WIN: 56, R_WSP: 58, R_BSP: 60, R_WOUT: 62, R_OUT: 64, R_DBG: 66, R_WS: 68}
    s.wait_lg0()
    for r, p in src.items():
        s.I(f's_mov_b64 {S(r, 2)}, {S(p, 2)}')
    if DIAG:
        s.I(f's_mov_b32 {S(STAMP0)}, {S(sTS)}')
    s.I(f's_cmp_ge_u32 {S(sWV)}, 4')
    s.I('s_cbranch_scc1 L_g1')
    return s


def ln_issue(s, va, ngroups):
    X = [va.get(16, 4) for _ in range(ngroups)]
    off = va.get()
    s.I(f's_lshl_b32 {S(sT0)}, {S(sWV)}, 2')
    s.I(f's_add_u32 {S(sT0)}, {S(sT0)}, {S(sR0)}')
    s.I(f's_sub_u32 {S(sT0)}, {S(sT0)}, 16')
    s.I(f'v_add_u32 {V(off)}, {S(sT0)}, {V(vG)}')
    s.I(f'v_lshlrev_b32 {V(off)}, 10, {V(off)}')
    s.I(f'v_lshl_add_u32 {V(off)}, {V(vI)}, 4, {V(off)}')
    for t in range(ngroups):
        if t:
            s.I(f'v_add_u32 {V(off)}, 0x8000, {V(off)}')
        for q in range(4):
            s.I(f'buffer_load_dwordx4 {V(X[t] + 4 * q, 4)}, {V(off)}, {srd(R_X)}, 0 offen offset:{256 * q}', tag=f'x{t}')
    va.put(off)
    return X


def ln_compute(s, va, X, halo_first):
    ng = len(X)
    U = va.get(32, 2)
    sm, sq = va.get(), va.get()
    rp = va.get(2, 2)
    adr = [va.get() for _ in range(ng)]
    t1, t2, t3 = va.get(), va.get(), va.get()
    s.I(f's_lshl_b32 {S(sT0)}, {S(sWV)}, 2')
    for t in range(ng):
        a = adr[t]
        if t == 0 and halo_first:
            s.I(f'v_add_u32 {V(t1)}, {S(sT0)}, {V(vG)}')
            s.I(f'v_and_b32 {V(t2)}, 1, {V(t1)}')
            s.I(f'v_xor_b32 {V(t2)}, 1, {V(t2)}')
            s.I(f'v_lshrrev_b32 {V(t1)}, 1, {V(t1)}')
            s.I(f'v_lshl_add_u32 {V(t1)}, {V(t2)}, 3, {V(t1)}')
            s.I(f'v_mov_b32 {V(t3)}, {hx(XN)}')
        else:
            s.I(f's_add_u32 {S(sT1)}, {S(sT0)}, {32 * t - 16}')
            s.I(f'v_add_u32 {V(t1)}, {S(sT1)}, {V(vG)}')
            s.I(f'v_lshrrev_b32 {V(t2)}, 5, {V(t1)}')
            s.I(f'v_and_b32 {V(t3)}, 1, {V(t1)}')
            s.I(f'v_lshl_add_u32 {V(t3)}, {V(t2)}, 1, {V(t3)}')
            s.I(f'v_lshlrev_b32 {V(t3)}, 14, {V(t3)}')
            s.I(f'v_add_u32 {V(t3)}, {hx(XN + 16384)}, {V(t3)}')
            s.I(f'v_bfe_u32 {V(t1)}, {V(t1)}, 1, 4')
        s.I(f'v_xor_b32 {V(t2)}, {V(vI)}, {V(t1)}')
        s.I(f'v_lshl_add_u32 {V(t3)}, {V(t1)}, 10, {V(t3)}')
        s.I(f'v_lshl_add_u32 {V(a)}, {V(t2)}, 4, {V(t3)}')
    s.I(f's_mov_b32 {S(sA)}, 0x3f803f80')
    s.I(f's_mov_b32 {S(sB)}, 0xffff0000')
    for t in range(ng):
        x = X[t]
        s.I(f'v_mov_b32 {V(sm)}, 0')
        s.I(f'v_mov_b32 {V(sq)}, 0')
        s.wait_vm(f'x{t}')
        for j in range(16):
            s.I(f'v_dot2c_f32_bf16 {V(sm)}, {S(sA)}, {V(x + j)}')
            s.I(f'v_dot2c_f32_bf16 {V(sq)}, {V(x + j)}, {V(x + j)}')
        chain = []
        for rot in (8, 4, 2, 1):
            chain.append(f'v_add_f32_dpp {V(sm)}, {V(sm)}, {V(sm)} row_ror:{rot} row_mask:0xf bank_mask:0xf')
            chain.append(f'v_add_f32_dpp {V(sq)}, {V(sq)}, {V(sq)} row_ror:{rot} row_mask:0xf bank_mask:0xf')
        chain += [
            f'v_mul_f32 {V(sm)}, {hx(f2u(1.0 / 512))}, {V(sm)}',
            f'v_mul_f32 {V(sq)}, {hx(f2u(1.0 / 512))}, {V(sq)}',
            f'v_fma_f32 {V(sq)}, -{V(sm)}, {V(sm)}, {V(sq)}',
            f'v_max_f32 {V(sq)}, 0, {V(sq)}',
            f'v_add_f32 {V(sq)}, {hx(f2u(1e-5))}, {V(sq)}',
            f'v_rsq_f32 {V(rp)}, {V(sq)}',
            f'v_mul_f32 {V(rp + 1)}, -{V(sm)}, {V(rp)}',
        ]
        unp = []
        for j in range(16):
            unp.append(f'v_lshlrev_b32 {V(U + 2 * j)}, 16, {V(x + j)}')
            unp.append(f'v_and_b32 {V(U + 2 * j + 1)}, {S(sB)}, {V(x + j)}')
        for k in range(3):
            s.I(unp[k])
        s.weave(chain, unp[3:], per=2)
        for q in range(4):
            for j in range(4 * q, 4 * q + 4):
                s.I(f'v_pk_fma_f32 {V(U + 2 * j, 2)}, {V(U + 2 * j, 2)}, {V(rp, 2)}, {V(rp, 2)} op_sel:[0,0,1] op_sel_hi:[1,0,1]')
            for j in range(4 * q, 4 * q + 4):
                s.I(f'v_cvt_pk_bf16_f32 {V(x + j)}, {V(U + 2 * j)}, {V(U + 2 * j + 1)}')
            s.I(f'ds_write_b128 {V(adr[t])}, {V(x + 4 * q, 4)} offset:{256 * q}')
    va.put(U, 32)
    for r in (sm, sq, t1, t2, t3):
        va.put(r)
    va.put(rp, 2)
    for a in adr:
        va.put(a)
    s.wait_lg0()
    for x in X:
        va.put(x, 16)


def xn_addr(s, va, blk0_sgpr_shift):
    A = [va.get() for _ in range(4)]
    t = va.get()
    s.I(f'v_xor_b32 {V(t)}, {V(vG)}, {V(vI)}')
    s.I(f'v_lshlrev_b32 {V(t)}, 4, {V(t)}')
    s.I(f'v_lshl_add_u32 {V(t)}, {V(vI)}, 10, {V(t)}')
    if blk0_sgpr_shift:
        s.I(f's_lshl_b32 {S(sT0)}, {S(sSIG)}, 15')
        s.I(f's_add_u32 {S(sT0)}, {S(sT0)}, {hx(XN + 16384)}')
    else:
        s.I(f's_mov_b32 {S(sT0)}, {hx(XN + 16384)}')
    s.I(f'v_add_u32 {V(A[0])}, {S(sT0)}, {V(t)}')
    for k in range(1, 4):
        s.I(f'v_xor_b32 {V(A[k])}, {k << 6}, {V(A[0])}')
    va.put(t)
    return A


def zw_addr(s, va):
    a0, a1, t, u = va.get(), va.get(), va.get(), va.get()
    s.I(f'v_and_b32 {V(t)}, 1, {V(vG)}')
    s.I(f'v_lshrrev_b32 {V(u)}, 2, {V(vI)}')
    s.I(f'v_lshl_add_u32 {V(u)}, {V(t)}, 2, {V(u)}')
    s.I(f'v_mul_u32_u24 {V(a0)}, 192, {V(u)}')
    s.I(f'v_lshrrev_b32 {V(u)}, 1, {V(vG)}')
    s.I(f'v_mul_u32_u24 {V(u)}, 3072, {V(u)}')
    s.I(f'v_add_u32 {V(a0)}, {V(a0)}, {V(u)}')
    s.I(f'v_and_b32 {V(u)}, 3, {V(vI)}')
    s.I(f'v_lshl_add_u32 {V(a0)}, {V(u)}, 3, {V(a0)}')
    s.I(f's_mul_i32 {S(sT0)}, {S(sHALF)}, 3')
    s.I(f's_add_u32 {S(sT1)}, {S(sT0)}, 1')
    s.I(f'v_xor_b32 {V(u)}, {S(sT1)}, {V(t)}')
    s.I(f'v_lshl_add_u32 {V(a1)}, {V(u)}, 5, {V(a0)}')
    s.I(f'v_xor_b32 {V(u)}, {S(sT0)}, {V(t)}')
    s.I(f'v_lshl_add_u32 {V(a0)}, {V(u)}, 5, {V(a0)}')
    s.I(f'v_add_u32 {V(t)}, 6144, {V(a0)}')
    s.I(f'v_add_u32 {V(u)}, 6144, {V(a1)}')
    return a0, a1, t, u


def zstage(s, va, c0, acc, XA, WA, pre_barrier, fillers, next_reads, first_reads_done=False):
    FS = [dict(A=[[va.get(4, 4) for p in range(2)] for k in range(2)],
               W=[[va.get(4, 4) for j in range(3)] for k in range(2)]) for _ in range(2)]

    def reads(ms):
        f = FS[ms & 1]
        c = c0 + ms // 2
        slot = c % 3
        out = []
        for k in range(2):
            kk = 2 * ms + k
            ksl = kk % 4
            for jj in range(3):
                base = WA[(jj & 1) + 2 * k]
                o = WR + slot * 24576 + (ksl & 2) * 6144 + (64 if jj == 2 else 0)
                for rd in range(2):
                    out.append((f'ds_read_b64_tr_b16 {V(f["W"][k][jj] + 2 * rd, 2)}, {V(base)} offset:{o + rd * 1536}', f'r{ms}_{k}'))
                if jj == 0:
                    for p in range(2):
                        out.append((f'ds_read_b128 {V(f["A"][k][p], 4)}, {V(XA[kk & 3])} offset:{(kk >> 2) * 256 + p * 16384}', f'r{ms}_{k}'))
        return out

    def mfmas(ms):
        f = FS[ms & 1]
        out = []
        for k in range(2):
            if k == 1:
                out.append(lambda st, ms=ms: st.wait_lg(f'r{ms}_1'))
            for jj in range(3):
                for p in range(2):
                    cin = '0' if (ms == 0 and k == 0) else V(acc[p][jj], 4)
                    out.append(f'v_mfma_f32_16x16x32_bf16 {V(acc[p][jj], 4)}, {V(f["W"][k][jj], 4)}, {V(f["A"][k][p], 4)}, {cin}')
        return out

    for it in reads(0) + list(fillers(c0)):
        s.emit(it)
    for ms in range(8):
        fl = []
        if ms & 1:
            c = c0 + ms // 2 + 1
            s.wait_lg0()
            pre_barrier(c)
            s.barrier()
            fl = list(fillers(c))
        else:
            s.wait_lg(f'r{ms}_0')
        nxt = reads(ms + 1) if ms < 7 else next_reads
        s.weave(mfmas(ms), nxt + fl, per=2)
    for f in FS:
        for k in range(2):
            for r in f['A'][k] + f['W'][k]:
                va.put(r, 4)


def gelu(s, va, regs):
    C = va.get(2, 2)
    s.I(f'v_mov_b32 {V(C)}, {hx(f2u(GC0))}')
    s.I(f'v_mov_b32 {V(C + 1)}, {hx(f2u(GC1))}')
    T = va.get(8, 2)
    for b in range(0, len(regs), 4):
        g = regs[b:b + 4]
        for i, u in enumerate(g):
            s.I(f'v_pk_mul_f32 {V(T + 2 * i, 2)}, {V(u, 2)}, {V(u, 2)}')
        for i, u in enumerate(g):
            s.I(f'v_pk_fma_f32 {V(T + 2 * i, 2)}, {V(T + 2 * i, 2)}, {V(C, 2)}, {V(C, 2)} op_sel:[0,1,0] op_sel_hi:[1,1,0]')
        for i, u in enumerate(g):
            s.I(f'v_pk_mul_f32 {V(T + 2 * i, 2)}, {V(T + 2 * i, 2)}, {V(u, 2)}')
        for i in range(2 * len(g)):
            s.I(f'v_exp_f32 {V(T + i)}, {V(T + i)}')
        for i, u in enumerate(g):
            s.I(f'v_pk_add_f32 {V(T + 2 * i, 2)}, {V(T + 2 * i, 2)}, 1.0 op_sel_hi:[1,0]')
        for i in range(2 * len(g)):
            s.I(f'v_rcp_f32 {V(T + i)}, {V(T + i)}')
        for i, u in enumerate(g):
            s.I(f'v_pk_mul_f32 {V(u, 2)}, {V(T + 2 * i, 2)}, {V(u, 2)}')
    va.put(T, 8)
    va.put(C, 2)


def get_nonce(s, va, vn, lab):
    z = va.get()
    s.I(f's_mov_b32 {S(sSPIN)}, {SPIN}')
    s.I(f'v_readfirstlane_b32 {S(sNONCE)}, {V(vn)}')
    s.I(f's_cmp_lg_u32 {S(sNONCE)}, 0')
    s.I(f's_cbranch_scc1 {lab}_ok')
    s.I(f'v_mov_b32 {V(z)}, 0')
    s.label(f'{lab}_spin')
    s.I('s_sleep 1')
    s._push(Ins(f'buffer_load_dword {V(vn)}, {V(z)}, {srd(R_DBG)}, 0 offen sc1'))
    s._push(Ins('s_waitcnt vmcnt(0)'))
    s.I(f'v_readfirstlane_b32 {S(sNONCE)}, {V(vn)}')
    s.I(f's_sub_u32 {S(sSPIN)}, {S(sSPIN)}, 1')
    s.I(f's_cbranch_scc1 {lab}_ok')
    s.I(f's_cmp_eq_u32 {S(sNONCE)}, 0')
    s.I(f's_cbranch_scc1 {lab}_spin')
    s.label(f'{lab}_ok')
    va.put(z)


def write_flag(s, va, lab, off_expr_items):
    d, z = va.get(), va.get()
    s.I(f's_cmp_lg_u32 {S(sWL)}, 0')
    s.I(f's_cbranch_scc1 {lab}')
    for it in off_expr_items:
        s.I(it)
    s.I(f'v_mov_b32 {V(d)}, {S(sNONCE)}')
    s.I(f'v_mov_b32 {V(z)}, 0')
    s.I('s_mov_b64 exec, 1')
    s.I(f'buffer_store_dword {V(d)}, {V(z)}, {srd(R_WS)}, {S(sT0)} offen sc1', count=False)
    s.I('s_mov_b64 exec, -1')
    s.label(lab)
    va.put(d)
    va.put(z)


def poll_flags(s, va, lab, voff, soff):
    f = va.get()
    s.I(f's_mov_b32 {S(sSPIN)}, {SPIN}')
    s.label(f'{lab}_spin')
    s._push(Ins(f'buffer_load_dword {V(f)}, {V(voff)}, {srd(R_WS)}, {S(soff)} offen sc1'))
    s.wait_vm0()
    s.I(f'v_cmp_ne_u32 vcc, {S(sNONCE)}, {V(f)}')
    s.I(f's_cbranch_vccz {lab}_ok')
    s.I('s_sleep 1')
    s.I(f's_sub_u32 {S(sSPIN)}, {S(sSPIN)}, 1')
    s.I(f's_cbranch_scc0 {lab}_spin')
    s.label(f'{lab}_ok')
    va.put(f)


def g0(common):
    s = common.fork('g0')
    va = Alloc(4, 255)
    X = ln_issue(s, va, 3)
    s.I(f's_or_b32 {S(sT0)}, s2, {S(sWV)}')
    s.I(f's_cmp_lg_u32 {S(sT0)}, 0')
    s.I('s_cbranch_scc1 L_nononce')
    t, z = va.get(), va.get()
    s.I(f's_or_b32 {S(sT0)}, {S(sTS)}, 1')
    s.I(f'v_mov_b32 {V(t)}, {S(sT0)}')
    s.I(f'v_mov_b32 {V(z)}, 0')
    s.I('s_mov_b64 exec, 1')
    s.I(f'buffer_store_dword {V(t)}, {V(z)}, {srd(R_DBG)}, 0 offen sc1', count=False)
    s.I('s_mov_b64 exec, -1')
    s.label('L_nononce')
    va.put(t)
    va.put(z)
    XA = xn_addr(s, va, True)
    WA = zw_addr(s, va)
    ln_compute(s, va, X, True)
    vn, z = va.get(), va.get()
    s.I(f'v_mov_b32 {V(z)}, 0')
    s.I(f'buffer_load_dword {V(vn)}, {V(z)}, {srd(R_DBG)}, 0 offen sc1')
    va.put(z)
    stamp(s, 1)
    s.barrier()
    stamp(s, 2)
    acc = [[va.get(4, 4) for j in range(3)] for p in range(2)]
    zstage(s, va, 0, acc, XA, WA, lambda c: None, lambda c: [], [])
    for r in list(XA) + list(WA):
        va.put(r)
    stamp(s, 3)
    pairs = [acc[p][j] + 2 * h for p in range(2) for j in range(3) for h in range(2)]
    gelu(s, va, pairs)
    SS = va.get(8, 2)
    for p in range(2):
        pr = pairs[6 * p:6 * p + 6]
        a, q = SS + 4 * p, SS + 4 * p + 2
        s.I(f'v_pk_add_f32 {V(a, 2)}, {V(pr[0], 2)}, {V(pr[1], 2)}')
        s.I(f'v_pk_mul_f32 {V(q, 2)}, {V(pr[0], 2)}, {V(pr[0], 2)}')
        s.I(f'v_pk_fma_f32 {V(q, 2)}, {V(pr[1], 2)}, {V(pr[1], 2)}, {V(q, 2)}')
        for k in range(2, 6):
            s.I(f'v_pk_add_f32 {V(a, 2)}, {V(a, 2)}, {V(pr[k], 2)}')
            s.I(f'v_pk_fma_f32 {V(q, 2)}, {V(pr[k], 2)}, {V(pr[k], 2)}, {V(q, 2)}')
    for k in range(4):
        s.I(f'v_add_f32 {V(SS + 2 * k)}, {V(SS + 2 * k)}, {V(SS + 2 * k + 1)}')
    v8 = va.get()
    s.I(f'v_lshlrev_b32 {V(v8)}, 3, {V(vLANE)}')
    s.I(f'v_permlane32_swap_b32 {V(SS)}, {V(SS + 4)}')
    s.I(f'v_permlane32_swap_b32 {V(SS + 2)}, {V(SS + 6)}')
    s.I(f'v_add_f32 {V(SS)}, {V(SS)}, {V(SS + 4)}')
    s.I(f'v_add_f32 {V(SS + 2)}, {V(SS + 2)}, {V(SS + 6)}')
    s.I(f's_lshl_b32 {S(sA)}, {S(sM)}, 1')
    s.I(f's_add_u32 {S(sA)}, {S(sA)}, {S(sSIG)}')
    s.I(f'v_permlane16_swap_b32 {V(SS)}, {V(SS + 2)}')
    s.I(f's_lshl_b32 {S(sA)}, {S(sA)}, 13')
    s.I(f's_add_u32 {S(sA)}, {S(sA)}, {hx(ST_OFF)}')
    s.I(f'v_add_f32 {V(SS)}, {V(SS)}, {V(SS + 2)}')
    s.I(f's_add_u32 {S(sB)}, {S(sA)}, 4096')
    get_nonce(s, va, vn, 'L_n0')
    va.put(vn)
    s.I(f's_lshl_b32 {S(sT0)}, {S(sN)}, 1')
    s.I(f's_add_u32 {S(sT0)}, {S(sT0)}, {S(sHALF)}')
    s.I(f's_lshl_b32 {S(sT0)}, {S(sT0)}, 9')
    s.I(f's_add_u32 {S(sT0)}, {S(sT0)}, {S(sA)}')
    s.I(f'v_mov_b32 {V(SS + 1)}, {S(sNONCE)}')
    s.I(f'buffer_store_dwordx2 {V(SS, 2)}, {V(v8)}, {srd(R_WS)}, {S(sT0)} offen sc1', tag='pub')
    stamp(s, 4)

    AV = [va.get() for _ in range(4)]
    v16, v16x, vW = va.get(), va.get(), va.get()
    GT = va.get(32, 2)
    rs = va.get(4)
    trw, trr, zst, zstx = va.get(), va.get(), va.get(), va.get()
    vF1, vF2 = va.get(), va.get()

    def setup():
        t, u = va.get(), va.get()
        s.I(f's_lshl_b32 {S(sT0)}, {S(sWL)}, 2')
        s.I(f'v_add_u32 {V(t)}, {S(sT0)}, {V(vG)}')
        s.I(f'v_xor_b32 {V(u)}, {V(vI)}, {V(t)}')
        s.I(f'v_lshlrev_b32 {V(u)}, 4, {V(u)}')
        s.I(f'v_lshl_add_u32 {V(AV[0])}, {V(t)}, 13, {V(u)}')
        for b in range(1, 4):
            d = (32 * (b >> 1) + (b & 1)) * 4096 - 1024 * b
            s.I(f'v_add_u32 {V(AV[b])}, {hx(d)}, {V(AV[0])}')
        s.I(f'v_lshlrev_b32 {V(v16)}, 4, {V(vLANE)}')
        s.I(f's_cmp_eq_u32 {S(sC6)}, 1')
        s.I(f's_cselect_b32 {S(sT0)}, 0, {hx(OOB)}')
        s.I(f'v_or_b32 {V(v16x)}, {S(sT0)}, {V(v16)}')
        s.I(f's_cmp_eq_u32 {S(sHALF)}, 0')
        s.I(f's_cselect_b32 {S(sT0)}, 0, {S(sT0)}')
        s.I(f'v_or_b32 {V(zstx)}, {S(sT0)}, {V(v16)}')
        s.I(f'v_lshrrev_b32 {V(t)}, 3, {V(vLANE)}')
        s.I(f'v_lshrrev_b32 {V(u)}, 4, {V(vLANE)}')
        s.I(f'v_lshlrev_b32 {V(u)}, 1, {V(u)}')
        s.I(f'v_xor_b32 {V(u)}, {V(u)}, {V(vLANE)}')
        s.I(f'v_and_b32 {V(u)}, 7, {V(u)}')
        s.I(f'v_lshlrev_b32 {V(u)}, 4, {V(u)}')
        s.I(f'v_lshl_add_u32 {V(vW)}, {V(t)}, 10, {V(u)}')
        s.I(f's_lshl_b32 {S(sT0)}, {S(sWL)}, 11')
        s.I(f's_add_u32 {S(sT0)}, {S(sT0)}, {SCR}')
        s.I(f'v_lshlrev_b32 {V(t)}, 6, {V(vI)}')
        s.I(f'v_lshl_add_u32 {V(t)}, {V(vG)}, 4, {V(t)}')
        s.I(f'v_add_u32 {V(trw)}, {S(sT0)}, {V(t)}')
        s.I(f'v_lshrrev_b32 {V(t)}, 3, {V(vI)}')
        s.I(f'v_lshl_add_u32 {V(t)}, {V(vG)}, 2, {V(t)}')
        s.I(f'v_lshlrev_b32 {V(t)}, 6, {V(t)}')
        s.I(f'v_and_b32 {V(u)}, 3, {V(vI)}')
        s.I(f'v_lshl_add_u32 {V(t)}, {V(u)}, 4, {V(t)}')
        s.I(f'v_bfe_u32 {V(u)}, {V(vI)}, 2, 1')
        s.I(f'v_lshl_add_u32 {V(t)}, {V(u)}, 3, {V(t)}')
        s.I(f'v_add_u32 {V(trr)}, {S(sT0)}, {V(t)}')
        s.I(f'v_lshl_add_u32 {V(t)}, {V(vI)}, 1, {S(sHALF)}')
        s.I(f'v_lshlrev_b32 {V(vF1)}, 6, {V(t)}')
        s.I(f'v_and_b32 {V(t)}, 7, {V(vLANE)}')
        s.I(f'v_lshlrev_b32 {V(vF2)}, 6, {V(t)}')
        va.put(t)
        va.put(u)

    def gather_issue(raw=False):
        for p in range(16):
            txt = f'buffer_load_dwordx2 {V(GT + 2 * p, 2)}, {V(v8)}, {srd(R_WS)}, {S(sA if p < 8 else sB)} offen offset:{(p & 7) * 512} sc1'
            if raw:
                s._push(Ins(txt))
            else:
                s.I(txt, tag='gat')

    def gather_check():
        bad = va.get()
        s.I(f's_mov_b32 {S(sSPIN)}, {SPIN}')
        s.wait_vm('gat')
        s.label('L_gchk')
        s.I(f'v_xor_b32 {V(bad)}, {S(sNONCE)}, {V(GT + 1)}')
        for p in range(1, 16):
            s.I(f'v_bitop3_b32 {V(bad)}, {V(bad)}, {V(GT + 2 * p + 1)}, {S(sNONCE)} bitop3:0xf6')
        s.I(f'v_cmp_ne_u32 vcc, 0, {V(bad)}')
        s.I('s_cbranch_vccz L_gok')
        s.I(f's_sub_u32 {S(sSPIN)}, {S(sSPIN)}, 1')
        s.I('s_cbranch_scc1 L_gok')
        gather_issue(raw=True)
        s._push(Ins('s_waitcnt vmcnt(0)'))
        s.I('s_branch L_gchk')
        s.label('L_gok')
        if DIAG:
            s.I(f's_sub_u32 {S(STAMP0 + 20)}, {SPIN}, {S(sSPIN)}')
        for step in (16, 8, 4, 2):
            for p in range(0, step, 2):
                s.I(f'v_add_f32 {V(GT + p)}, {V(GT + p)}, {V(GT + p + step)}')
        a, b = GT, GT + 1
        s.I(f'v_mul_f32 {V(a)}, {hx(f2u(1.0 / 688))}, {V(a)}')
        s.I(f'v_mov_b32 {V(b)}, {V(a)}')
        s.I(f'v_permlane16_swap_b32 {V(a)}, {V(b)}')
        s.I(f'v_fma_f32 {V(b)}, -{V(a)}, {V(a)}, {V(b)}')
        s.I(f'v_max_f32 {V(b)}, 0, {V(b)}')
        s.I(f'v_add_f32 {V(b)}, {hx(f2u(1e-5))}, {V(b)}')
        s.I(f'v_rsq_f32 {V(rs)}, {V(b)}')
        s.I(f'v_mul_f32 {V(rs + 2)}, -{V(a)}, {V(rs)}')
        s.I(f'v_mov_b32 {V(rs + 1)}, {V(rs)}')
        s.I(f'v_mov_b32 {V(rs + 3)}, {V(rs + 2)}')
        s.I(f'v_permlane32_swap_b32 {V(rs)}, {V(rs + 1)}')
        s.I(f'v_permlane32_swap_b32 {V(rs + 2)}, {V(rs + 3)}')
        va.put(bad)

    def normalise():
        P = GT
        F = GT + 12
        s.I(f's_mul_i32 {S(sT0)}, {S(sN)}, {393216}')
        s.I(f's_lshl_b32 {S(sT1)}, {S(sM)}, 1')
        s.I(f's_add_u32 {S(sT1)}, {S(sT1)}, {S(sSIG)}')
        s.I(f's_lshl_b32 {S(sT1)}, {S(sT1)}, 1')
        s.I(f's_add_u32 {S(sT1)}, {S(sT1)}, {S(sHALF)}')
        s.I(f's_mul_i32 {S(sT1)}, {S(sT1)}, 3072')
        s.I(f's_add_u32 {S(sT0)}, {S(sT0)}, {S(sT1)}')
        for j in range(3):
            for p in range(2):
                for r in range(4):
                    s.I(f'v_fma_f32 {V(acc[p][j] + r)}, {V(acc[p][j] + r)}, {V(rs + p)}, {V(rs + 2 + p)}')
            for p in range(2):
                for h in range(2):
                    s.I(f'v_cvt_pk_bf16_f32 {V(P + 4 * j + 2 * p + h)}, {V(acc[p][j] + 2 * h)}, {V(acc[p][j] + 2 * h + 1)}')
            o = (j & 1) * 1024
            s.I(f'ds_write_b128 {V(trw)}, {V(P + 4 * j, 4)} offset:{o}')
            for rd in range(2):
                s.I(f'ds_read_b64_tr_b16 {V(F + 4 * j + 2 * rd, 2)}, {V(trr)} offset:{o + 128 * rd}')
        for j in range(3):
            s.I(f'buffer_store_dwordx4 {V(F + 4 * j, 4)}, {V(zstx if j == 2 else v16)}, {srd(R_WS)}, {S(sT0)} offen offset:{1024 * j} sc1', tag='z2')

    def kap(c):
        if ROT:
            s.I(f's_and_b32 {S(sT2)}, {S(sN)}, {ROT}')
            s.I(f's_xor_b32 {S(sT2)}, {S(sT2)}, {c}')
        else:
            s.I(f's_mov_b32 {S(sT2)}, {c}')

    def issue_A(c):
        kap(c)
        s.I(f's_lshl_b32 {S(sT2)}, {S(sT2)}, 8')
        s.I(f's_add_u32 {S(sSO)}, {S(sC)}, {S(sT2)}')
        s.I(f's_add_u32 m0, {S(sLB)}, {PA + ((c + 2) % 4) * 16384}')
        for b in range(4):
            s.I(f'buffer_load_dwordx4 {V(AV[b])}, {srd(R_WSP)}, {S(sSO)} offen offset:{1024 * b} lds', tag=f'c{c}')

    def issue_B(c):
        kap(c)
        s.I(f's_mul_i32 {S(sT2)}, {S(sT2)}, 24576')
        s.I(f's_add_u32 {S(sSO)}, {S(sD)}, {S(sT2)}')
        s.I(f's_mul_i32 {S(sT3)}, {S(sWL)}, 6144')
        s.I(f's_add_u32 m0, {S(sT3)}, {PB + (c % 4) * 24576}')
        for b in range(4):
            s.I(f'buffer_load_dwordx4 {V(v16)}, {srd(R_WS)}, {S(sSO)} offen offset:{1024 * b} sc1 lds', tag=f'c{c}')
        s.I(f's_add_u32 {S(sSO)}, {S(sSO)}, 4096')
        s.I(f's_add_u32 m0, m0, 4096')
        s.I(f'buffer_load_dwordx4 {V(v16)}, {srd(R_WS)}, {S(sSO)} offen sc1 lds', tag=f'c{c}')
        s.I(f'buffer_load_dwordx4 {V(v16x)}, {srd(R_WS)}, {S(sSO)} offen offset:1024 sc1 lds', tag=f'c{c}')

    def issue_act(q, slot, tag, nins=4, count=True):
        s.I(f's_add_u32 {S(sSO)}, {S(sA)}, {q * 16384}')
        s.I(f's_add_u32 m0, {S(sLB)}, {PA + slot * 16384}')
        for b in range(nins):
            s.I(f'buffer_load_dwordx4 {V(v16)}, {srd(R_WS)}, {S(sSO)} offen offset:{1024 * b} sc1 lds', tag=tag, count=count)

    def issue_w(srdr, row0, nper, slot, tag):
        s.I(f's_mul_i32 {S(sT3)}, {S(sWL)}, {nper * 1024}')
        s.I(f's_add_u32 m0, {S(sT3)}, {PB + slot * 24576}')
        s.I(f's_lshl_b32 {S(sT3)}, {S(sT3)}, 3')
        s.I(f's_add_u32 {S(sSO)}, {S(sT3)}, {S(sB)}')
        s.I(f's_add_u32 {S(sSO)}, {S(sSO)}, {row0 * 1024}')
        for b in range(nper):
            if b == 4:
                s.I('s_add_u32 m0, m0, 4096')
                s.I(f's_add_u32 {S(sSO)}, {S(sSO)}, {7168 + 4096}')
            elif b:
                s.I(f's_add_u32 {S(sSO)}, {S(sSO)}, 7168')
            s.I(f'buffer_load_dwordx4 {V(vW)}, {srd(srdr)}, {S(sSO)} offen offset:{1024 * (b & 3)} lds', tag=tag)

    for ep in range(5, 17):
        if ep == FLAG_EP:
            s.wait_vm('z2')
            stamp(s, 8)
        s.barrier()
        if ep == 5:
            setup()
            s.I(f's_lshl_b32 {S(sLB)}, {S(sWL)}, 12')
            s.I(f's_lshl_b32 {S(sC)}, {S(sR0)}, 12')
            s.I(f's_mul_i32 {S(sD)}, {S(sN)}, 393216')
            s.I(f's_mul_i32 {S(sT0)}, {S(sWL)}, 6144')
            s.I(f's_add_u32 {S(sD)}, {S(sD)}, {S(sT0)}')
        if ep == FLAG_EP:
            write_flag(s, va, 'L_f1', [f's_lshl_b32 {S(sT0)}, {S(sN)}, 5', f's_add_u32 {S(sT0)}, {S(sT0)}, {S(sM)}',
                                       f's_lshl_b32 {S(sT0)}, {S(sT0)}, 6', f's_add_u32 {S(sT0)}, {S(sT0)}, {hx(F1_OFF)}'])
        if ep == GATHER_EP:
            stamp(s, 5)
            gather_issue()
        if ep == CHECK_EP:
            gather_check()
            stamp(s, 6)
        if ep == NORM_EP:
            normalise()
            stamp(s, 7)
        if ep == 14:
            issue_A(0)
        if ep == 15:
            issue_A(1)
        if ep == 16:
            issue_A(2)
            issue_A(3)
    stamp(s, 9)
    s.I(f's_lshl_b32 {S(sT0)}, {S(sN)}, 11')
    s.I(f's_add_u32 {S(sT0)}, {S(sT0)}, {hx(F1_OFF)}')
    poll_flags(s, va, 'L_p1', vF1, sT0)
    if DIAG:
        s.I(f's_sub_u32 {S(STAMP0 + 21)}, {SPIN}, {S(sSPIN)}')
    stamp(s, 10)
    for c in range(4):
        issue_B(c)
    s.I(f's_mul_i32 {S(sA)}, {S(sM)}, {A3_M}')
    s.I(f's_add_u32 {S(sA)}, {S(sA)}, {hx(A3_OFF)}')
    s.I(f's_add_u32 {S(sA)}, {S(sA)}, {S(sLB)}')
    s.I(f's_lshl_b32 {S(sB)}, {S(sN)}, 7')
    for p in range(21):
        s.wait_vm(f'c{p}')
        if p in (0, 8, 16):
            stamp(s, 11 + p // 8)
        s.barrier()
        c = p + 3
        if p >= 1:
            if c <= 15:
                issue_B(c)
                issue_A(c)
            elif c <= 19:
                if c == 16:
                    s.I(f's_lshl_b32 {S(sT0)}, {S(sM)}, 9')
                    s.I(f's_add_u32 {S(sT0)}, {S(sT0)}, {hx(F2_OFF)}')
                    issue_w(R_WO, 0, 4, 0, 'c16')
                    poll_flags(s, va, 'L_p2', vF2, sT0)
                    issue_act(0, (c + 2) % 4, 'c16')
                else:
                    issue_w(R_WO, 128 * (c - 16), 4, c % 4, f'c{c}')
                    issue_act(c - 16, (c + 2) % 4, f'c{c}')
            else:
                issue_w(R_WOUT, 192 * (c - 20), 6, c % 4, 'wout')
    stamp(s, 14)
    s.I(f's_lshl_b32 {S(sT0)}, {S(sM)}, 9')
    s.I(f's_add_u32 {S(sT0)}, {S(sT0)}, {hx(F3_OFF)}')
    poll_flags(s, va, 'L_p3', vF2, sT0)
    stamp(s, 15)
    for q in range(4):
        issue_act(4 + q, q, f'h{q}')
    for q in range(6):
        if q < 5:
            s.wait_vm(f'h{q}')
        else:
            s.wait_vm0()
        if q == 0:
            stamp(s, 16)
        s.barrier()
        if q == 1:
            issue_act(8, 0, 'h4')
        if q == 2:
            s.I(f's_cmp_ge_u32 {S(sWL)}, 2')
            s.I('s_cbranch_scc1 L_noh5')
            issue_act(9, 1, 'h5', count=False)
            s.label('L_noh5')
    stamp(s, 17)
    dump_stamps(s, va)
    s.I('s_endpgm')
    return s, va


def g1(common):
    s = common.fork('g1')
    s.label('L_g1')
    va = Alloc(4, 255)
    X = ln_issue(s, va, 2)
    ZV = [va.get() for _ in range(3)]
    QV = va.get()
    t, u, w = va.get(), va.get(), va.get()
    s.I(f's_mul_i32 {S(sT1)}, {S(sWL)}, {32 * 2752}')
    s.I(f's_add_u32 {S(sT2)}, {S(sC6)}, 5')
    for t3 in range(3):
        z = ZV[t3]
        s.I(f'v_add_u32 {V(t)}, {64 * t3}, {V(vLANE)}')
        s.I(f'v_mul_u32_u24 {V(u)}, 0xaaab, {V(t)}')
        s.I(f'v_lshrrev_b32 {V(u)}, 19, {V(u)}')
        s.I(f'v_mul_u32_u24 {V(w)}, 12, {V(u)}')
        s.I(f'v_sub_u32 {V(t)}, {V(t)}, {V(w)}')
        s.I(f'v_bfe_u32 {V(w)}, {V(u)}, 2, 1')
        s.I(f'v_lshlrev_b32 {V(z)}, 1, {V(w)}')
        s.I(f'v_xor_b32 {V(t)}, {V(t)}, {V(z)}')
        s.I(f'v_and_b32 {V(z)}, 3, {V(u)}')
        s.I(f'v_lshl_add_u32 {V(z)}, {V(w)}, 3, {V(z)}')
        s.I(f'v_lshrrev_b32 {V(u)}, 3, {V(u)}')
        s.I(f'v_lshl_add_u32 {V(z)}, {V(u)}, 2, {V(z)}')
        s.I(f'v_mul_u32_u24 {V(z)}, 2752, {V(z)}')
        s.I(f'v_lshl_add_u32 {V(z)}, {V(t)}, 4, {V(z)}')
        s.I(f's_sub_u32 {S(sT0)}, {S(sT1)}, {1024 * t3}')
        s.I(f'v_add_u32 {V(z)}, {S(sT0)}, {V(z)}')
        s.I(f'v_lshrrev_b32 {V(t)}, 1, {V(t)}')
        s.I(f'v_cmp_gt_u32 vcc, {S(sT2)}, {V(t)}')
        s.I(f'v_mov_b32 {V(u)}, {hx(OOB)}')
        s.I(f'v_cndmask_b32 {V(z)}, {V(u)}, {V(z)}, vcc')
    s.I(f's_lshl_b32 {S(sC)}, {S(sSB)}, 5')
    s.I(f's_mul_i32 {S(sLB)}, {S(sWL)}, 6144')
    s.I(f's_lshl_b32 {S(sD)}, {S(sN)}, 7')

    def dma_items(c):
        if c > 15:
            return []
        slot = c % 3
        out = []
        if c < 8:
            col = 1376 if c < 4 else 0
            for sg in range(2):
                out.append(f's_add_u32 {S(sSO)}, {S(sC)}, {col + ((c & 3) * 128 + sg * 16) * 2752}')
                out.append(f's_add_u32 m0, {S(sLB)}, {WR + slot * 24576 + sg * 3072}')
                for t3 in range(3):
                    out.append((f'buffer_load_dwordx4 {V(ZV[t3])}, {srd(R_WIN)}, {S(sSO)} offen offset:{1024 * t3} lds', f'c{c}'))
        else:
            for tt in range(2):
                out.append(f's_add_u32 {S(sSO)}, {S(sD)}, {((c - 8) * 64 + tt * 4) * 3072}')
                out.append(f's_add_u32 m0, {S(sLB)}, {WR + slot * 24576 + tt * 3072}')
                for p in range(3):
                    out.append((f'buffer_load_dwordx4 {V(QV)}, {srd(R_QKV)}, {S(sSO)} offen offset:{1024 * p} lds', f'c{c}'))
        return out

    for c in range(3):
        for it in dma_items(c):
            s.emit(it)
    va.put(w)
    ln_compute(s, va, X, False)
    s.wait_vm('c0')
    stamp(s, 1)
    s.barrier()
    s.I(f'v_bfe_u32 {V(t)}, {V(vLANE)}, 3, 2')
    s.I(f'v_lshrrev_b32 {V(u)}, 5, {V(vLANE)}')
    s.I(f'v_lshl_add_u32 {V(t)}, {V(u)}, 3, {V(t)}')
    s.I(f's_lshl_b32 {S(sT0)}, {S(sWL)}, 4')
    s.I(f'v_add_u32 {V(t)}, {S(sT0)}, {V(t)}')
    s.I(f'v_mul_u32_u24 {V(QV)}, 3072, {V(t)}')
    s.I(f'v_lshlrev_b32 {V(u)}, 1, {V(vG)}')
    s.I(f'v_xor_b32 {V(u)}, {V(u)}, {V(vLANE)}')
    s.I(f'v_and_b32 {V(u)}, 7, {V(u)}')
    s.I(f'v_lshl_add_u32 {V(QV)}, {V(u)}, 4, {V(QV)}')
    XZ = xn_addr(s, va, True)
    WA = zw_addr(s, va)
    vn = va.get()
    bsp = va.get(2)
    s.I(f's_lshl_b32 {S(sT0)}, {S(sSIG)}, 5')
    s.I(f's_add_u32 {S(sT0)}, {S(sT0)}, {S(sR0)}')
    s.I(f's_lshl_b32 {S(sT0)}, {S(sT0)}, 1')
    s.I(f'v_lshlrev_b32 {V(t)}, 2, {V(vI)}')
    s.I(f'buffer_load_dword {V(bsp)}, {V(t)}, {srd(R_BSP)}, {S(sT0)} offen', tag='misc')
    s.I(f'v_mov_b32 {V(u)}, 0')
    s.I(f'buffer_load_dword {V(vn)}, {V(u)}, {srd(R_DBG)}, 0 offen sc1', tag='misc')
    s.wait_vm('c1')
    s.barrier()
    for it in dma_items(3):
        s.emit(it)
    TB = [va.get(), va.get()]
    XQ = xn_addr(s, va, False)
    XH = [va.get() for _ in range(4)]
    for k in range(4):
        s.I(f'v_subrev_u32 {V(XH[k])}, 16384, {V(XQ[k])}')
    lr8 = va.get()
    s.I(f'v_and_b32 {V(t)}, 1, {V(vG)}')
    s.I(f'v_lshrrev_b32 {V(u)}, 2, {V(vI)}')
    s.I(f'v_lshl_add_u32 {V(lr8)}, {V(t)}, 2, {V(u)}')
    s.I(f'v_lshrrev_b32 {V(t)}, 1, {V(lr8)}')
    s.I(f'v_xor_b32 {V(t)}, {S(sWL)}, {V(t)}')
    s.I(f'v_lshlrev_b32 {V(t)}, 5, {V(t)}')
    s.I(f'v_lshl_add_u32 {V(t)}, {V(lr8)}, 7, {V(t)}')
    s.I(f'v_and_b32 {V(u)}, 3, {V(vI)}')
    s.I(f'v_lshl_add_u32 {V(t)}, {V(u)}, 3, {V(t)}')
    s.I(f'v_lshrrev_b32 {V(u)}, 1, {V(vG)}')
    s.I(f'v_mul_u32_u24 {V(u)}, 6144, {V(u)}')
    s.I(f'v_add_u32 {V(TB[0])}, {V(t)}, {V(u)}')
    s.I(f'v_add_u32 {V(TB[1])}, 12288, {V(TB[0])}')
    s.wait_vm('c2')
    s.barrier()
    for it in dma_items(4):
        s.emit(it)
    bD, bP, bE0, bO0 = (va.get(4, 4) for _ in range(4))
    MD = va.get(2)
    big = va.get()
    s.I(f'v_mov_b32 {V(big)}, {hx(BIGNEG)}')
    s.I(f's_cmp_eq_u32 {S(sM)}, 0')
    s.I(f's_cselect_b32 {S(sT0)}, {hx(BIGNEG)}, 0')
    s.I(f'v_mov_b32 {V(MD)}, 0')
    s.I(f'v_mov_b32 {V(MD + 1)}, 0')
    okv = va.get()
    s.I(f'v_mov_b32 {V(okv)}, {S(sT0)}')
    for r in range(4):
        s.I(f'v_lshl_add_u32 {V(u)}, {V(vG)}, 2, {r}')
        s.I(f'v_sub_u32 {V(t)}, {V(vI)}, {V(u)}')
        s.I(f'v_cmp_gt_u32 vcc, 8, {V(t)}')
        s.I(f'v_cndmask_b32 {V(bD + r)}, {V(big)}, 0, vcc')
        s.I(f'v_cmp_gt_i32 vcc, -8, {V(t)}')
        s.I(f'v_cndmask_b32 {V(bP + r)}, {V(big)}, 0, vcc')
        s.I(f'v_cndmask_b32 {V(bE0 + r)}, {V(big)}, {V(okv)}, vcc')
        s.I(f'v_cmp_gt_i32 vcc, 0, {V(t)}')
        s.I(f'v_cndmask_b32 {V(bO0 + r)}, {V(big)}, {V(okv)}, vcc')
        s.I(f'v_mov_b32 {V(t)}, {hx(0xffff << (16 * (r & 1)))}')
        s.I(f'v_cndmask_b32 {V(t)}, {V(t)}, 0, vcc')
        s.I(f'v_or_b32 {V(MD + (r >> 1))}, {V(MD + (r >> 1))}, {V(t)}')
        s.I(f'v_cmp_gt_u32 vcc, 8, {V(u)}')
        s.I(f'v_cndmask_b32 {V(bO0 + r)}, {V(big)}, {V(bO0 + r)}, vcc')
    va.put(big)
    va.put(okv)
    s.wait_vm('c3')
    s.barrier()
    for it in dma_items(5):
        s.emit(it)
    s.I(f'v_and_b32 {V(bsp + 1)}, 0xffff0000, {V(bsp)}')
    s.I(f'v_lshlrev_b32 {V(bsp)}, 16, {V(bsp)}')
    get_nonce(s, va, vn, 'L_n1')
    va.put(vn)
    s.wait_vm('c4')
    stamp(s, 2)
    s.barrier()

    z1 = [[va.get(4, 4) for j in range(3)] for p in range(2)]
    QT = [va.get(4, 4) for _ in range(4)]
    KT = [va.get(4, 4) for _ in range(5)]
    QF = [dict(A=[va.get(4, 4) for _ in range(5)], W=[va.get(4, 4) for _ in range(3)])]

    def qreads(ks):
        f = QF[ks & 1]
        slot = (8 + ks // 2) % 3
        out = []

        def wr(p):
            for rd in range(2):
                out.append(f'ds_read_b64_tr_b16 {V(f["W"][p] + 2 * rd, 2)}, {V(TB[ks & 1])} offset:{WR + slot * 24576 + rd * 3072 + p * 1024}')
        wr(0)
        for b in range(1, 5):
            out.append(f'ds_read_b128 {V(f["A"][b], 4)}, {V(XQ[ks & 3])} offset:{(ks >> 2) * 256 + (b - 1) * 16384}')
        wr(1)
        out.append(f'ds_read_b128 {V(f["A"][0], 4)}, {V(XH[ks & 3])} offset:{(ks >> 2) * 256}')
        wr(2)
        return out

    zstage(s, va, 4, z1, XZ, WA, lambda c: s.wait_vm(f'c{c}'), lambda c: dma_items(c + 2), qreads(0))
    for r in list(XZ) + list(WA):
        va.put(r)
    VV = [va.get(4, 4) for _ in range(5)]
    QF.append(dict(A=[va.get(4, 4) for _ in range(5)], W=[va.get(4, 4) for _ in range(3)]))
    stamp(s, 3)
    for ks in range(16):
        f = QF[ks & 1]
        s.wait_lg0()
        fl = []
        if ks & 1:
            c = 8 + ks // 2 + 1
            s.wait_vm(f'c{c}')
            s.barrier()
            fl = dma_items(c + 2)
        mm = []
        for b in range(1, 5):
            mm.append(f'v_mfma_f32_16x16x32_bf16 {V(QT[b - 1], 4)}, {V(f["W"][0], 4)}, {V(f["A"][b], 4)}, {V(QT[b - 1], 4) if ks else 0}')
        for b in (1, 2, 3, 4, 0):
            mm.append(f'v_mfma_f32_16x16x32_bf16 {V(KT[b], 4)}, {V(f["W"][1], 4)}, {V(f["A"][b], 4)}, {V(KT[b], 4) if ks else 0}')
        for b in range(5):
            mm.append(f'v_mfma_f32_16x16x32_bf16 {V(VV[b], 4)}, {V(f["A"][b], 4)}, {V(f["W"][2], 4)}, {V(VV[b], 4) if ks else 0}')
        s.weave(mm, (qreads(ks + 1) if ks < 15 else []) + fl, per=2)
    for f in QF:
        for r in f['A'] + f['W']:
            va.put(r, 4)
    for r in list(XQ) + XH + TB + ZV + [QV]:
        va.put(r)
    stamp(s, 4)

    Qp = va.get(8, 2)
    Kp = va.get(10, 2)
    Vp = va.get(12, 2)
    ones = va.get(2, 2)
    s.I(f'v_mov_b32 {V(ones)}, 0x3f803f80')
    s.I(f'v_mov_b32 {V(ones + 1)}, 0x3f803f80')

    def cvt2(d, a):
        s.I(f'v_cvt_pk_bf16_f32 {V(d)}, {V(a)}, {V(a + 1)}')
        s.I(f'v_cvt_pk_bf16_f32 {V(d + 1)}, {V(a + 2)}, {V(a + 3)}')
    for b in range(4):
        cvt2(Qp + 2 * b, QT[b])
    for b in (1, 2, 3, 4, 0):
        cvt2(Kp + 2 * b, KT[b])
    prev = [0, 0, 1, 2]
    pb = [bE0, bO0, bP, bP]
    Sd, Sp = QT, KT[1:]
    mm = []
    for b in range(4):
        mm.append(f'v_mfma_f32_16x16x16_bf16 {V(Sd[b], 4)}, {V(Kp + 2 * (b + 1), 2)}, {V(Qp + 2 * b, 2)}, {V(bD, 4)}')
        mm.append(f'v_mfma_f32_16x16x16_bf16 {V(Sp[b], 4)}, {V(Kp + 2 * prev[b], 2)}, {V(Qp + 2 * b, 2)}, {V(pb[b], 4)}')
    fl = []
    for d, b in ((0, 0), (6, 0), (2, 1), (8, 2), (4, 3), (10, 4)):
        fl.append(f'v_cvt_pk_bf16_f32 {V(Vp + d)}, {V(VV[b])}, {V(VV[b] + 1)}')
        fl.append(f'v_cvt_pk_bf16_f32 {V(Vp + d + 1)}, {V(VV[b] + 2)}, {V(VV[b] + 3)}')
    s.weave(mm, fl, per=2)
    mx = va.get(4)
    for b in range(4):
        for r in range(4):
            s.I(f'v_max_f32 {V(Sd[b] + r)}, {V(Sd[b] + r)}, {V(Sp[b] + r)}')
        s.I(f'v_max3_f32 {V(mx + b)}, {V(Sd[b])}, {V(Sd[b] + 1)}, {V(Sd[b] + 2)}')
        s.I(f'v_max_f32 {V(mx + b)}, {V(mx + b)}, {V(Sd[b] + 3)}')
    SC = 0.25 * LOG2E
    s.I(f's_mov_b32 {S(sA)}, {hx(f2u(SC))}')
    s.I(f'v_permlane32_swap_b32 {V(mx)}, {V(mx + 2)}')
    s.I(f'v_permlane32_swap_b32 {V(mx + 1)}, {V(mx + 3)}')
    s.I(f'v_max_f32 {V(mx)}, {V(mx)}, {V(mx + 2)}')
    s.I(f'v_max_f32 {V(mx + 1)}, {V(mx + 1)}, {V(mx + 3)}')
    s.I(f'v_permlane16_swap_b32 {V(mx)}, {V(mx + 1)}')
    s.I(f'v_max_f32 {V(mx)}, {V(mx)}, {V(mx + 1)}')
    s.I(f'v_mul_f32 {V(mx)}, {hx(f2u(-SC))}, {V(mx)}')
    s.I(f'v_mov_b32 {V(mx + 1)}, {V(mx)}')
    s.I(f'v_permlane16_swap_b32 {V(mx)}, {V(mx + 1)}')
    s.I(f'v_mov_b32 {V(mx + 2)}, {V(mx)}')
    s.I(f'v_mov_b32 {V(mx + 3)}, {V(mx + 1)}')
    s.I(f'v_permlane32_swap_b32 {V(mx)}, {V(mx + 2)}')
    s.I(f'v_permlane32_swap_b32 {V(mx + 1)}, {V(mx + 3)}')
    voff = [0, 6, 2, 8]
    Pk = Qp
    PB4 = Sp
    OT = VV[:4]
    LS = [va.get(4, 4) for _ in range(4)]
    for b in range(4):
        for r in range(4):
            s.I(f'v_fma_f32 {V(Sd[b] + r)}, {V(Sd[b] + r)}, {S(sA)}, {V(mx + b)}')
        for r in range(4):
            s.I(f'v_exp_f32 {V(Sd[b] + r)}, {V(Sd[b] + r)}')
        cvt2(Pk + 2 * b, Sd[b])
        for h in range(2):
            s.I(f'v_and_b32 {V(PB4[b] + 2 + h)}, {V(Pk + 2 * b + h)}, {V(MD + h)}')
        for h in range(2):
            s.I(f'v_xor_b32 {V(PB4[b] + h)}, {V(Pk + 2 * b + h)}, {V(PB4[b] + 2 + h)}')
        s.I(f'v_mfma_f32_16x16x16_bf16 {V(LS[b], 4)}, {V(ones, 2)}, {V(Pk + 2 * b, 2)}, 0')
        s.I(f'v_mfma_f32_16x16x32_bf16 {V(OT[b], 4)}, {V(Vp + voff[b], 4)}, {V(PB4[b], 4)}, 0')
    v16 = va.get()
    s.I(f'v_lshlrev_b32 {V(v16)}, 4, {V(vLANE)}')
    s.I(f's_mul_i32 {S(sA)}, {S(sM)}, {A3_M}')
    s.I(f's_add_u32 {S(sA)}, {S(sA)}, {hx(A3_OFF)}')
    s.I(f's_lshl_b32 {S(sT0)}, {S(sN)}, 2')
    s.I(f's_add_u32 {S(sT0)}, {S(sT0)}, {S(sWL)}')
    s.I(f's_lshl_b32 {S(sT0)}, {S(sT0)}, 11')
    s.I(f's_add_u32 {S(sT0)}, {S(sT0)}, {S(sA)}')
    OU = [Sd[0], Sd[1]]
    for b in range(4):
        s.I(f'v_rcp_f32 {V(LS[b])}, {V(LS[b])}')
        for h in range(2):
            s.I(f'v_pk_mul_f32 {V(OT[b] + 2 * h, 2)}, {V(OT[b] + 2 * h, 2)}, {V(LS[b], 2)} op_sel_hi:[1,0]')
        cvt2(OU[b >> 1] + 2 * (b & 1), OT[b])
        if b & 1:
            s.I(f'buffer_store_dwordx4 {V(OU[b >> 1], 4)}, {V(v16)}, {srd(R_WS)}, {S(sT0)} offen offset:{1024 * (b >> 1)} sc1', tag='o')
    stamp(s, 5)
    va.put(Qp, 8); va.put(Kp, 10); va.put(Vp, 12); va.put(ones, 2); va.put(mx, 4); va.put(MD, 2)
    for r in LS + VV + KT + [bD, bP, bE0, bO0] + QT[2:]:
        va.put(r, 4)
    gelu(s, va, [z1[p][j] + 2 * h for p in range(2) for j in range(3) for h in range(2)])
    for r in QT[:2]:
        va.put(r, 4)

    AA = [va.get() for _ in range(4)]
    BB = [va.get(), va.get()]
    s.I(f'v_xor_b32 {V(t)}, {V(vG)}, {V(vI)}')
    s.I(f'v_lshlrev_b32 {V(t)}, 4, {V(t)}')
    s.I(f'v_and_b32 {V(u)}, 3, {V(vI)}')
    s.I(f'v_lshl_add_u32 {V(t)}, {V(u)}, 8, {V(t)}')
    s.I(f'v_lshrrev_b32 {V(u)}, 2, {V(vI)}')
    s.I(f'v_lshl_add_u32 {V(t)}, {V(u)}, 12, {V(t)}')
    s.I(f's_lshl_b32 {S(sT0)}, {S(sSIG)}, 11')
    s.I(f'v_add_u32 {V(AA[0])}, {S(sT0)}, {V(t)}')
    for k in range(1, 4):
        s.I(f'v_xor_b32 {V(AA[k])}, {k << 6}, {V(AA[0])}')
    s.I(f's_mul_i32 {S(sT0)}, {S(sHALF)}, 3072')
    s.I(f's_add_u32 {S(sT0)}, {S(sT0)}, {PB}')
    s.I(f'v_add_u32 {V(BB[0])}, {S(sT0)}, {V(v16)}')
    s.I(f'v_add_u32 {V(BB[1])}, {49152}, {V(BB[0])}')
    A3 = va.get()
    W3 = [[va.get(), va.get()] for _ in range(2)]
    s.I(f's_lshl_b32 {S(sT0)}, {S(sSIG)}, 10')
    s.I(f'v_add_u32 {V(A3)}, {S(sT0)}, {V(v16)}')
    for be in range(2):
        s.I(f's_lshl_b32 {S(sT0)}, {S(sHALF)}, 1')
        s.I(f's_add_u32 {S(sT0)}, {S(sT0)}, {be}')
        s.I(f'v_lshrrev_b32 {V(t)}, 1, {V(lr8)}')
        s.I(f'v_xor_b32 {V(t)}, {S(sT0)}, {V(t)}')
        s.I(f'v_lshlrev_b32 {V(t)}, 5, {V(t)}')
        s.I(f'v_lshl_add_u32 {V(t)}, {V(lr8)}, 7, {V(t)}')
        s.I(f'v_and_b32 {V(u)}, 3, {V(vI)}')
        s.I(f'v_lshl_add_u32 {V(t)}, {V(u)}, 3, {V(t)}')
        s.I(f'v_lshrrev_b32 {V(u)}, 1, {V(vG)}')
        s.I(f'v_lshl_add_u32 {V(t)}, {V(u)}, 10, {V(t)}')
        s.I(f'v_add_u32 {V(W3[0][be])}, {PB}, {V(t)}')
        s.I(f'v_add_u32 {V(W3[1][be])}, {PB + 49152}, {V(t)}')
    va.put(lr8)
    XR = va.get(16, 2)
    vout, hst = va.get(), va.get()
    s.I(f's_lshl_b32 {S(sT0)}, {S(sSIG)}, 5')
    s.I(f's_add_u32 {S(sT0)}, {S(sT0)}, {S(sR0)}')
    s.I(f's_lshl_b32 {S(sT0)}, {S(sT0)}, 10')
    s.I(f's_lshl_b32 {S(sT1)}, {S(sN)}, 7')
    s.I(f's_add_u32 {S(sT0)}, {S(sT0)}, {S(sT1)}')
    s.I(f's_lshl_b32 {S(sT1)}, {S(sHALF)}, 6')
    s.I(f's_add_u32 {S(sD)}, {S(sT0)}, {S(sT1)}')
    s.I(f'v_lshlrev_b32 {V(t)}, 11, {V(vI)}')
    s.I(f'v_lshl_add_u32 {V(u)}, {V(vG)}, 3, {V(t)}')
    for p in range(2):
        for be in range(2):
            s.I(f'buffer_load_dwordx2 {V(XR + 8 * p + 4 * be, 2)}, {V(u)}, {srd(R_X)}, {S(sD)} offen offset:{1024 * p + 32 * be}', tag='xr')
    s.I(f'v_and_b32 {V(vout)}, 1, {V(vG)}')
    s.I(f'v_lshl_add_u32 {V(t)}, {V(vout)}, 5, {V(t)}')
    s.I(f'v_lshrrev_b32 {V(vout)}, 1, {V(vG)}')
    s.I(f'v_lshl_add_u32 {V(vout)}, {V(vout)}, 4, {V(t)}')
    s.I(f's_cmp_eq_u32 {S(sC6)}, 1')
    s.I(f's_cselect_b32 {S(sT0)}, 0, {hx(OOB)}')
    s.I(f's_cmp_eq_u32 {S(sHALF)}, 0')
    s.I(f's_cselect_b32 {S(sT0)}, 0, {S(sT0)}')
    s.I(f'v_or_b32 {V(hst)}, {S(sT0)}, {V(v16)}')
    s.I(f's_mul_i32 {S(sT0)}, {S(sHALF)}, 3')
    s.I(f's_add_u32 {S(sT0)}, {S(sT0)}, {S(sSB)}')
    s.I(f's_add_u32 {S(sT0)}, {S(sT0)}, 32')
    s.I(f's_lshl_b32 {S(sT0)}, {S(sT0)}, 1')
    s.I(f's_add_u32 {S(sT0)}, {S(sT0)}, {S(sSIG)}')
    s.I(f's_lshl_b32 {S(sT0)}, {S(sT0)}, 10')
    s.I(f's_add_u32 {S(sC)}, {S(sT0)}, {S(sA)}')
    s.I(f's_add_u32 {S(sB)}, {S(sC)}, 4096')
    va.put(t)
    va.put(u)
    stamp(s, 6)

    G = [[va.get(4, 4) for j in range(3)] for p in range(2)]
    PF = [dict(A=[[va.get(4, 4) for p in range(2)] for k in range(2)],
               B=[[va.get(4, 4) for j in range(3)] for k in range(2)]) for _ in range(2)]
    F3 = [dict(A=[va.get(8, 4) for k in range(2)], W=[[va.get(4, 4) for be in range(2)] for k in range(2)]) for _ in range(2)]
    accS = [[PF[1]['A'][p][be] for be in range(2)] for p in range(2)]
    accB = [[PF[1]['B'][p][be] for be in range(2)] for p in range(2)]

    def flagoff(base):
        return [f's_lshl_b32 {S(sT0)}, {S(sM)}, 3', f's_add_u32 {S(sT0)}, {S(sT0)}, {S(sN)}',
                f's_lshl_b32 {S(sT0)}, {S(sT0)}, 6', f's_add_u32 {S(sT0)}, {S(sT0)}, {hx(base)}']

    def Pbar(p):
        s.wait_lg0()
        if p == OFLAG_P:
            s.wait_vm('o')
        if p == HFLAG_P:
            s.wait_vm('h')
            stamp(s, 10)
        s.barrier()
        if p == OFLAG_P:
            write_flag(s, va, 'L_f2', flagoff(F2_OFF))
        if p == HFLAG_P:
            write_flag(s, va, 'L_f3', flagoff(F3_OFF))

    def preads(ms):
        f = PF[ms & 1]
        c = ms // 2
        out = []
        for k in range(2):
            ksl = (2 * ms + k) % 4
            bs = c % 4
            out.append((f'ds_read_b128 {V(f["B"][k][0], 4)}, {V(BB[bs >> 1])} offset:{(bs & 1) * 24576 + ksl * 6144}', f'p{ms}_{k}'))
            for p in range(2):
                out.append((f'ds_read_b128 {V(f["A"][k][p], 4)}, {V(AA[ksl])} offset:{PA + ((c + 2) % 4) * 16384 + p * 1024}', f'p{ms}_{k}'))
            for j in range(1, 3):
                out.append((f'ds_read_b128 {V(f["B"][k][j], 4)}, {V(BB[bs >> 1])} offset:{(bs & 1) * 24576 + ksl * 6144 + j * 1024}', f'p{ms}_{k}'))
        return out

    def reads3(ms):
        f = F3[ms & 1]
        out = []
        for k in range(2):
            if ms < 8:
                q, ksl = ms // 2, (2 * ms + k) % 4
                aslot, wk = (16 + q + 2) % 4, 6 * q + ksl
            else:
                kk = 2 * (ms - 8) + k
                q, ksl = kk // 4, kk % 4
                aslot, wk = q % 4, kk
            halfstep = (ms == 18 and k == 1)
            for un in range(1 if halfstep else 2):
                out.append((f'ds_read_b128 {V(f["A"][k] + 4 * un, 4)}, {V(A3)} offset:{PA + aslot * 16384 + (2 * ksl + un) * 2048}', f'a{ms}'))
        for k in range(2):
            if ms < 8:
                wk = 6 * (ms // 2) + (2 * ms + k) % 4
            else:
                wk = 2 * (ms - 8) + k
            halfstep = (ms == 18 and k == 1)
            hi = 1 if wk >= 12 else 0
            for be in range(2):
                for rd in range(1 if halfstep else 2):
                    out.append((f'ds_read_b64_tr_b16 {V(f["W"][k][be] + 2 * rd, 2)}, {V(W3[hi][be])} offset:{(wk - 12 * hi) * 4096 + rd * 2048}', f'w{ms}'))
        return out

    def swaps3(ms):
        f = F3[ms & 1]
        out = []
        for k in range(2):
            if ms == 18 and k == 1:
                continue
            a = f['A'][k]
            out.append(f'v_swap_b32 {V(a + 2)}, {V(a + 4)}')
            out.append(f'v_swap_b32 {V(a + 3)}, {V(a + 5)}')
        return out

    def mfma3(ms):
        f = F3[ms & 1]
        acc = accS if ms < 8 else accB
        out = []
        for k in range(2):
            for be in range(2):
                for p in range(2):
                    cin = '0' if (ms in (0, 8) and k == 0) else V(acc[p][be], 4)
                    if ms == 18 and k == 1:
                        out.append(f'v_mfma_f32_16x16x16_bf16 {V(acc[p][be], 4)}, {V(f["W"][k][be], 2)}, {V(f["A"][k] + 2 * p, 2)}, {cin}')
                    else:
                        out.append(f'v_mfma_f32_16x16x32_bf16 {V(acc[p][be], 4)}, {V(f["W"][k][be], 4)}, {V(f["A"][k] + 4 * p, 4)}, {cin}')
        return out

    Pbar(0)
    stamp(s, 7)
    for it in preads(0):
        s.emit(it)
    for ms in range(32):
        f = PF[ms & 1]
        if ms & 1:
            Pbar(ms // 2 + 1)
        else:
            s.wait_lg(f'p{ms}_0')
        mm = []
        for k in range(2):
            if k == 1:
                mm.append(lambda st, ms=ms: st.wait_lg(f'p{ms}_1'))
            for j in range(3):
                for p in range(2):
                    cin = '0' if (ms == 0 and k == 0) else V(G[p][j], 4)
                    mm.append(f'v_mfma_f32_16x16x32_bf16 {V(G[p][j], 4)}, {V(f["B"][k][j], 4)}, {V(f["A"][k][p], 4)}, {cin}')
        fl = preads(ms + 1) if ms < 31 else reads3(0)
        if ms == 10:
            for p in range(2):
                for be in range(2):
                    x = XR + 8 * p + 4 * be
                    fl = fl + [f'v_and_b32 {V(x + 3)}, 0xffff0000, {V(x + 1)}', f'v_lshlrev_b32 {V(x + 2)}, 16, {V(x + 1)}',
                               f'v_and_b32 {V(x + 1)}, 0xffff0000, {V(x)}', f'v_lshlrev_b32 {V(x)}, 16, {V(x)}']
        s.weave(mm, fl, per=2)
    stamp(s, 8)
    HP = PF[0]['B'][0]
    for j in range(3):
        for p in range(2):
            for h in range(2):
                s.I(f'v_pk_add_f32 {V(G[p][j] + 2 * h, 2)}, {V(G[p][j] + 2 * h, 2)}, {V(bsp, 2)} op_sel:[0,{p}] op_sel_hi:[1,{p}]')
        for p in range(2):
            for h in range(2):
                s.I(f'v_pk_mul_f32 {V(G[p][j] + 2 * h, 2)}, {V(G[p][j] + 2 * h, 2)}, {V(z1[p][j] + 2 * h, 2)}')
        for p in range(2):
            cvt2(HP[j] + 2 * p, G[p][j])
        if j < 2:
            s.I(f'buffer_store_dwordx4 {V(HP[j], 4)}, {V(v16)}, {srd(R_WS)}, {S(sC)} offen offset:{2048 * j} sc1', tag='h')
        else:
            s.I(f'buffer_store_dwordx4 {V(HP[j], 4)}, {V(hst)}, {srd(R_WS)}, {S(sB)} offen sc1', tag='h')
    stamp(s, 9)
    for it in swaps3(0):
        s.emit(it)
    for ms in range(19):
        last_of_chunk = (ms & 1) if ms < 18 else False
        nxt = True
        if ms < 8:
            if ms & 1:
                Pbar(16 + ms // 2 + 1)
            if ms == 7:
                nxt = False
        else:
            if ms == 8:
                s.barrier()
                stamp(s, 11)
                for it in reads3(8) + swaps3(8):
                    s.emit(it)
            if (ms & 1) and ms < 18:
                s.wait_lg0()
                s.barrier()
            if ms == 18:
                nxt = False
        s.wait_lg0()
        fl = (reads3(ms + 1) + swaps3(ms + 1)) if nxt else []
        s.weave(mfma3(ms), fl, per=2)
    stamp(s, 12)
    T = F3[0]['A'][0]
    O = F3[0]['A'][1]
    cl = va.get(2, 2)
    s.I(f'v_mov_b32 {V(cl)}, {hx(f2u(-LOG2E))}')
    for p in range(2):
        for be in range(2):
            for h in range(2):
                s.I(f'v_pk_mul_f32 {V(T + 4 * be + 2 * h, 2)}, {V(accB[p][be] + 2 * h, 2)}, {V(cl, 2)} op_sel_hi:[1,0]')
        for i in range(8):
            s.I(f'v_exp_f32 {V(T + i)}, {V(T + i)}')
        for be in range(2):
            for h in range(2):
                s.I(f'v_pk_mul_f32 {V(accB[p][be] + 2 * h, 2)}, {V(accB[p][be] + 2 * h, 2)}, {V(accS[p][be] + 2 * h, 2)}')
        for i in range(4):
            s.I(f'v_pk_add_f32 {V(T + 2 * i, 2)}, {V(T + 2 * i, 2)}, 1.0 op_sel_hi:[1,0]')
        for i in range(8):
            s.I(f'v_rcp_f32 {V(T + i)}, {V(T + i)}')
        for be in range(2):
            for h in range(2):
                s.I(f'v_pk_fma_f32 {V(T + 4 * be + 2 * h, 2)}, {V(T + 4 * be + 2 * h, 2)}, {V(accB[p][be] + 2 * h, 2)}, {V(XR + 8 * p + 4 * be + 2 * h, 2)}')
        o = O + 4 * p
        for be in range(2):
            cvt2(o + 2 * be, T + 4 * be)
        s.I(f'v_permlane16_swap_b32 {V(o)}, {V(o + 2)}')
        s.I(f'v_permlane16_swap_b32 {V(o + 1)}, {V(o + 3)}')
        s.I(f'buffer_store_dwordx4 {V(o, 4)}, {V(vout)}, {srd(R_OUT)}, {S(sD)} offen offset:{1024 * p}')
    stamp(s, 13)
    dump_stamps(s, va)
    return s, va


HEADER = open('cdna_kernels/' + NAME + '.s.ref').read().split('; Override launch geometry')[0]


def main():
    c = prologue()
    a, va0 = g0(c)
    b, va1 = g1(c)
    out = [HEADER.rstrip('\n'),
           '; Persistent fused kernel: 256 workgroups (one per CU) x 8 waves. Generated by gen/kernel.py.',
           '; @launch grid=(256,1,1) block=(512,1,1) lds=163840',
           '.amdgcn_target "amdgcn-amd-amdhsa--gfx950"', '.text', f'.globl {NAME}_kernel', '.p2align 8',
           f'.type {NAME}_kernel,@function', f'{NAME}_kernel:']
    out += c.out + a.out + b.out
    out += ['L_end:', '    s_endpgm', '.section .rodata,"a"', '.p2align 6', f'.amdhsa_kernel {NAME}_kernel',
            '  .amdhsa_next_free_vgpr 256', '  .amdhsa_next_free_sgpr 102', '  .amdhsa_accum_offset 256',
            '  .amdhsa_group_segment_fixed_size 0', '  .amdhsa_kernarg_size 88', '  .amdhsa_user_sgpr_count 2',
            '  .amdhsa_user_sgpr_kernarg_segment_ptr 1', '  .amdhsa_system_sgpr_workgroup_id_x 1', '.end_amdhsa_kernel', '']
    dst = [x for x in sys.argv[1:] if not x.startswith('-')]
    path = dst[0] if dst else 'cdna_kernels/' + NAME + '.s'
    open(path, 'w').write('\n'.join(out))
    nb0 = sum(1 for l in a.out if l.strip() == 's_barrier')
    nb1 = sum(1 for l in b.out if l.strip() == 's_barrier')
    print(f'common {c.nins} ins; g0 {a.nins} ins ({a.nnops} nops, vgpr hi {va0.hi}, {nb0} barriers); '
          f'g1 {b.nins} ins ({b.nnops} nops, vgpr hi {va1.hi}, {nb1} barriers) -> {path}')
    assert nb0 == nb1


main()
```
